```python
import torch

def _softmax(x, axis=-1):
    return torch.softmax(x, dim=axis)
def _gelu(x):
    return torch.nn.functional.gelu(x, approximate="tanh")
def _silu(x):
    return torch.nn.functional.silu(x)
def _sigmoid(x):
    return torch.sigmoid(x)
def _layernorm(x, axis=-1, eps=1e-5):
    m = x.mean(dim=axis, keepdim=True)
    v = x.var(dim=axis, keepdim=True, unbiased=False)
    return (x - m) / torch.sqrt(v + eps)
def _scatter_add(tgt, idx, src, axis=0):
    return tgt.clone().index_add_(axis, idx, src)
def _segment_sum(src, seg, n):
    out = torch.zeros((n,) + src.shape[1:], dtype=src.dtype)
    return out.index_add_(0, seg, src)
def _pad(x, pw):
    flat = tuple(v for pair in reversed(pw) for v in pair)
    return torch.nn.functional.pad(x, flat)

kernel_name = 'standalone__mha_block_cached__near_ridge'

def setup_inputs():

    _w = (lambda a: (lambda t: t.to(torch.bfloat16) if t.is_floating_point() else t)(torch.as_tensor(a)))
    B, Sq, D = 8, 128, 512
    H, Sk, Dh = 32, 128, 128
    return {
        "x": _w((lambda *s: torch.randn(*s, dtype=torch.bfloat16) * 0.8)(B, Sq, D)),
        "k_cache": _w((lambda *s: torch.randn(*s, dtype=torch.bfloat16) * 0.8)(B, H, Sk, Dh)),
        "v_cache": _w((lambda *s: torch.randn(*s, dtype=torch.bfloat16) * 0.05)(B, H, Sk, Dh)),
        "wq": _w((lambda *s: torch.randn(*s, dtype=torch.bfloat16) * 0.8)(D, H * Dh) * (D ** -0.5)),
        "wo": _w((lambda *s: torch.randn(*s, dtype=torch.bfloat16) * 0.05)(H * Dh, D) * ((H * Dh) ** -0.5)),
    }

def reference(x, k_cache, v_cache, wq, wo):
    B, Sq, D = x.shape
    H, Dh = 32, 128
    q = (lambda x, *d: x.permute(*d))((x @ wq).reshape(B, Sq, H, Dh), 0, 2, 1, 3)
    scores = torch.einsum("bhqd,bhkd->bhqk", q, k_cache) * (Dh ** -0.5)
    p = _softmax(scores, axis=-1)
    o = torch.einsum("bhqk,bhkd->bhqd", p, v_cache)
    return (lambda x, *d: x.permute(*d))(o, 0, 2, 1, 3).reshape(B, Sq, H * Dh) @ wo
```

```python
NAME = "standalone__mha_block_cached__near_ridge_kernel"

class Asm:
    def __init__(self):
        self.lines = []
        self.nlabel = 0
    def e(self, s):
        self.lines.append("    " + s)
    def c(self, s):
        self.lines.append("    ; " + s)
    def label(self, l):
        self.lines.append(l + ":")
    def newlabel(self, p="L"):
        self.nlabel += 1
        return "%s_%d" % (p, self.nlabel)
    def text(self):
        return "\n".join(self.lines) + "\n"

HEADER = """; Kernarg layout for this problem (64 bytes, ptrs only, base s[0:1]):
"""

def kernel_begin(name):
    return """.text
.globl %s
.p2align 8
.type %s,@function
%s:
""" % (name, name, name)

def kernel_desc(name, vgpr, sgpr, accum):
    return """.section .rodata,"a"
.p2align 6
.amdhsa_kernel %s
  .amdhsa_next_free_vgpr %d
  .amdhsa_next_free_sgpr %d
  .amdhsa_accum_offset %d
  .amdhsa_group_segment_fixed_size 0
  .amdhsa_kernarg_size 64
  .amdhsa_user_sgpr_count 2
  .amdhsa_user_sgpr_kernarg_segment_ptr 1
  .amdhsa_system_sgpr_workgroup_id_x 1
.end_amdhsa_kernel
""" % (name, vgpr, sgpr, accum)

SRD_X, SRD_K, SRD_V, SRD_WQ, SRD_WO, SRD_OUT, SRD_DBG, SRD_WS = 32, 36, 40, 44, 48, 52, 56, 60
SIZES = {SRD_X: 1 << 20, SRD_K: 8 << 20, SRD_V: 8 << 20, SRD_WQ: 4 << 20, SRD_WO: 4 << 20, SRD_OUT: 1 << 20,
         SRD_DBG: 256, SRD_WS: 268435456}

def srd(r):
    return "s[%d:%d]" % (r, r + 3)

def emit_srds(a, which=None):
    a.e("s_load_dwordx16 s[16:31], s[0:1], 0")
    a.e("s_waitcnt lgkmcnt(0)")
    for i, r in enumerate([SRD_X, SRD_K, SRD_V, SRD_WQ, SRD_WO, SRD_OUT, SRD_DBG, SRD_WS]):
        if which is not None and r not in which:
            continue
        a.e("s_mov_b32 s%d, s%d" % (r, 16 + 2 * i))
        a.e("s_and_b32 s%d, s%d, 0xffff" % (r + 1, 17 + 2 * i))
        a.e("s_mov_b32 s%d, 0x%x" % (r + 2, SIZES[r]))
        a.e("s_mov_b32 s%d, 0x20000" % (r + 3))
```

```python
import re

REG_RE = re.compile(r'^([vas])(\d+)$')
RNG_RE = re.compile(r'^([vas])\[(\d+):(\d+)\]$')

def regs_of(op):
    op = op.strip()
    neg = op.lstrip('-')
    if neg.startswith('abs(') and neg.endswith(')'):
        neg = neg[4:-1]
    if neg.startswith('|') and neg.endswith('|'):
        neg = neg[1:-1]
    m = REG_RE.match(neg)
    if m:
        return {(m.group(1), int(m.group(2)))}
    m = RNG_RE.match(neg)
    if m:
        return {(m.group(1), i) for i in range(int(m.group(2)), int(m.group(3)) + 1)}
    if neg == 'vcc':
        return {('s', 106), ('s', 107)}
    if neg == 'exec':
        return {('s', 126), ('s', 127)}
    if neg == 'm0':
        return {('s', 124)}
    return set()

TRANS = ('v_exp_f32', 'v_log_f32', 'v_rcp_f32', 'v_rsq_f32', 'v_sqrt_f32', 'v_sin_f32', 'v_cos_f32')

class Ins:
    __slots__ = ('text', 'mn', 'ops', 'kind', 'defs', 'uses', 'srcc', 'srcab', 'tag', 'lds_dma', 'wide_store', 'data', 'size')
    def __init__(self, text, tag=None):
        self.text = text
        self.tag = tag
        t = text.split(';')[0].strip()
        parts = t.split(None, 1)
        self.mn = parts[0]
        rest = parts[1] if len(parts) > 1 else ''
        ops = []
        cur = ''
        depth = 0
        for ch in rest:
            if ch in '[(':
                depth += 1
            if ch in '])':
                depth -= 1
            if ch == ',' and depth == 0:
                ops.append(cur.strip()); cur = ''
            else:
                cur += ch
        if cur.strip():
            ops.append(cur.strip())
        mods = []
        if ops:
            lp = ops[-1].split()
            ops[-1] = lp[0]
            mods = lp[1:]
        self.ops = ops
        mn = self.mn
        self.defs = set(); self.uses = set(); self.srcc = set(); self.srcab = set(); self.data = set()
        self.lds_dma = False; self.wide_store = False
        R = [regs_of(o) for o in ops]
        if mn.startswith('v_mfma'):
            self.kind = 'mfma'
            self.defs = R[0]; self.srcab = R[1] | R[2]; self.srcc = R[3]; self.uses = self.srcab | self.srcc
        elif mn.startswith('v_'):
            self.kind = 'valu'
            if mn.startswith('v_cmp'):
                self.defs = R[0]; self.uses = set().union(*R[1:])
            elif mn.startswith('v_permlane') and 'swap' in mn:
                self.defs = R[0] | R[1]; self.uses = R[0] | R[1]
            elif mn.startswith('v_fmac') or mn.startswith('v_pk_fmac'):
                self.defs = R[0]; self.uses = set().union(*R)
            elif mn.startswith('v_add_co') or mn.startswith('v_addc_co') or mn.startswith('v_sub_co'):
                self.defs = R[0] | R[1]; self.uses = set().union(*R[2:])
            elif mn == 'v_nop':
                pass
            else:
                self.defs = R[0]; self.uses = set().union(*R[1:]) if len(R) > 1 else set()
                if mn.startswith('v_cndmask') and len(ops) == 3:
                    self.uses |= regs_of('vcc')
        elif mn.startswith('ds_'):
            self.kind = 'ds'
            if mn.startswith('ds_read') or mn.startswith('ds_bpermute') or mn.startswith('ds_permute') or mn.startswith('ds_swizzle'):
                self.defs = R[0]; self.uses = set().union(*R[1:])
            else:
                self.uses = set().union(*R)
        elif mn.startswith('buffer_') or mn.startswith('global_'):
            self.kind = 'vmem'
            if mn in ('buffer_wbl2', 'buffer_inv'):
                pass
            elif 'lds' in mods or 'load_lds' in mn:
                self.lds_dma = True
                self.uses = set().union(*R) | regs_of('m0')
            elif '_load' in mn:
                self.defs = R[0]; self.uses = set().union(*R[1:])
            elif '_atomic' in mn:
                self.uses = set().union(*R)
                if 'sc0' in mods:
                    self.defs = R[0]
            else:
                self.uses = set().union(*R)
                self.data = R[0] if mn.startswith('buffer_') else R[1]
                self.wide_store = mn.endswith('x3') or mn.endswith('x4')
        elif mn.startswith('s_load') or mn.startswith('s_memtime') or mn.startswith('s_memrealtime') or mn.startswith('s_buffer_load'):
            self.kind = 'smem'
            self.defs = R[0]; self.uses = set().union(*R[1:]) if len(R) > 1 else set()
        elif mn.startswith('s_'):
            self.kind = 'salu'
            if mn.startswith('s_cmp') or mn.startswith('s_cbranch') or mn in ('s_branch', 's_waitcnt', 's_nop', 's_barrier', 's_endpgm', 's_sleep', 's_setprio'):
                self.uses = set().union(*R) if R else set()
            else:
                self.defs = R[0] if R else set(); self.uses = set().union(*R[1:]) if len(R) > 1 else set()
                if 'saveexec' in mn:
                    self.defs |= regs_of('exec')
        else:
            raise ValueError("unknown instr " + text)

class GAsm:
    def __init__(self):
        self.items = []
    def e(self, text, tag=None):
        self.items.append(Ins(text, tag))
    def c(self, s):
        self.items.append(('comment', s))
    def label(self, l):
        self.items.append(('label', l))
    def raw(self, s):
        self.items.append(('raw', s))
    def wait_vm(self, tag):
        self.items.append(('waitvm', tag))
    def wait_lds_all(self):
        self.items.append(('waitlds',))

    def finalize(self):
        out = []
        hist = []
        pos = 0
        vmq = []
        ldsq = []
        smem_pending = set()
        stats = {'nops': 0, 'waits': 0}
        def emit(text, states=1):
            nonlocal pos
            out.append("    " + text)
            pos += states
        def do_wait(vm=None, lg=None):
            s = "s_waitcnt"
            if vm is not None:
                vm = min(vm, 63); s += " vmcnt(%d)" % vm
                del vmq[:max(0, len(vmq) - vm)]
            if lg is not None:
                lg = min(lg, 15); s += " lgkmcnt(%d)" % lg
                del ldsq[:max(0, len(ldsq) - lg)]
                if lg == 0:
                    smem_pending.clear()
            emit(s)
            stats['waits'] += 1
        for it in self.items:
            if isinstance(it, tuple):
                k = it[0]
                if k == 'comment':
                    out.append("    ; " + it[1])
                elif k == 'raw':
                    out.append(it[1])
                elif k == 'label':
                    out.append(it[1] + ":")
                elif k == 'waitvm':
                    idx = [i for i, x in enumerate(vmq) if x.tag == it[1]]
                    if idx:
                        do_wait(vm=len(vmq) - 1 - idx[-1])
                elif k == 'waitlds':
                    if ldsq:
                        do_wait(lg=0)
                continue
            ins = it
            if ins.mn == 's_waitcnt':
                m = re.search(r'vmcnt\((\d+)\)', ins.text)
                if m:
                    n = int(m.group(1)); del vmq[:max(0, len(vmq) - n)]
                m = re.search(r'lgkmcnt\((\d+)\)', ins.text)
                if m:
                    n = int(m.group(1)); del ldsq[:max(0, len(ldsq) - n)]
                    if n == 0:
                        smem_pending.clear()
                emit(ins.text)
                continue
            touched = ins.uses | ins.defs
            vm = lg = None
            for i, x in enumerate(vmq):
                if x.defs & touched:
                    vm = len(vmq) - 1 - i
            for i, x in enumerate(ldsq):
                if x.defs & touched:
                    lg = len(ldsq) - 1 - i
            if smem_pending & touched:
                lg = 0
            if vm is not None or lg is not None:
                do_wait(vm, lg)
            need = 0
            for (p, ppos) in hist:
                dist = pos - ppos - 1
                req = 0
                if p.kind == 'valu':
                    vd = {r for r in p.defs if r[0] != 's'}
                    sd = {r for r in p.defs if r[0] == 's'}
                    if ins.kind == 'mfma' and vd & ins.uses:
                        req = max(req, 2)
                    if ins.kind == 'valu':
                        if p.mn.split('_e')[0] in TRANS or p.mn in TRANS:
                            if vd & ins.uses and ins.mn not in TRANS:
                                req = max(req, 1)
                            if vd & ins.uses:
                                req = max(req, 1)
                        if ins.mn.startswith('v_permlane') and vd & ins.uses:
                            req = max(req, 2)
                        if ins.mn.startswith('v_readlane') or ins.mn.startswith('v_readfirstlane'):
                            if vd & ins.uses:
                                req = max(req, 1)
                            if sd & ins.uses:
                                req = max(req, 4)
                        if 'dpp' in ins.text and vd & ins.uses:
                            req = max(req, 2)
                        if sd & ins.uses:
                            req = max(req, 2)
                    if ins.kind == 'vmem' and sd & ins.uses:
                        req = max(req, 5)
                    if ins.kind == 'salu' and sd & ins.uses:
                        req = max(req, 1)
                elif p.kind == 'mfma':
                    passes = 8 if '32x32x16' in p.mn else 4
                    big = {8: 12, 4: 8}[passes]; ov = {8: 10, 4: 6}[passes]; war = {8: 7, 4: 3}[passes]
                    if ins.kind == 'mfma':
                        if p.defs & ins.srcab:
                            req = max(req, big)
                        if p.defs & ins.srcc:
                            if not (ins.srcc == p.defs and ins.mn == p.mn):
                                req = max(req, ov)
                        if p.defs & ins.defs and not (ins.srcc == p.defs and ins.mn == p.mn):
                            req = max(req, big)
                    elif ins.kind in ('valu', 'vmem', 'ds'):
                        if p.defs & touched:
                            req = max(req, big)
                        if ins.kind == 'valu' and p.srcc & ins.defs:
                            req = max(req, war)
                elif p.kind == 'salu':
                    if ('s', 124) in p.defs and ins.kind == 'vmem' and ins.lds_dma:
                        req = max(req, 1)
                elif p.kind == 'vmem':
                    if p.wide_store and p.data & ins.defs:
                        req = max(req, 2)
                if req - dist > need:
                    need = req - dist
            while need > 0:
                n = min(need, 16)
                emit("s_nop %d" % (n - 1), n)
                stats['nops'] += n
                need -= n
            st = 1
            if ins.mn == 's_nop':
                st = int(ins.ops[0]) + 1
            hist.append((ins, pos))
            emit(ins.text, st)
            hist = [(p, pp) for (p, pp) in hist if pos - pp <= 24]
            if ins.kind == 'vmem':
                vmq.append(ins)
            elif ins.kind == 'ds':
                ldsq.append(ins)
            elif ins.kind == 'smem':
                smem_pending |= ins.defs
        self.stats = stats
        return "\n".join(out) + "\n"
```

```python
import sys, math
from asmlib import HEADER, kernel_begin, kernel_desc, NAME, SRD_X, SRD_K, SRD_V, SRD_WQ, SRD_WO, SRD_OUT, SRD_DBG, SRD_WS, SIZES, srd
from gasm import GAsm

WS_O = 0x0000000
WS_P = 0x1000000
WS_F1 = 0x2000000
WS_F2 = 0x2100000
WS_ST = 0xF000000

def vr(b, n=1):
    return "v%d" % b if n == 1 else "v[%d:%d]" % (b, b + n - 1)
def ar(b, n=1):
    return "a%d" % b if n == 1 else "a[%d:%d]" % (b, b + n - 1)

ACC0, ACC1, PK = 64, 128, 192
AF = 32
XF = 224
RX = 232
RW = 240
SLOT = 32768
KBASE = 131072
VBASE = 0
MFMA = "v_mfma_f32_32x32x16_bf16"

def gen(path, stamps=False, ahead=3, spin_limit=1 << 18, nt="", poll_sleep=2):
    a = GAsm()
    e = a.e
    STAMP0 = 70
    nst = [0]
    def stamp():
        if stamps:
            e("s_memrealtime s[%d:%d]" % (STAMP0 + 2 * nst[0], STAMP0 + 2 * nst[0] + 1))
            nst[0] += 1
            assert STAMP0 + 2 * nst[0] <= 102
    e("s_cmp_ge_u32 s2, 256")
    e("s_cbranch_scc1 L_end")
    stamp()
    e("s_load_dwordx16 s[16:31], s[0:1], 0")
    e("s_getpc_b64 s[66:67]")
    a.label("L_pc")
    e("v_lshlrev_b32 v4, 7, v0")
    e("v_min_u32 v4, L_code_end-L_pc-4, v4")
    e("global_load_dword v5, v4, s[66:67]", tag="pf")
    e("v_lshrrev_b32 v2, 6, v0")
    e("v_and_b32 v1, 63, v0")
    e("v_readfirstlane_b32 s3, v2")
    e("s_and_b32 s6, s2, 7")
    e("s_lshr_b32 s65, s6, 1")
    e("s_and_b32 s7, s6, 1")
    e("s_lshr_b32 s5, s2, 3")
    e("s_and_b32 s64, s5, 7")
    e("s_lshl_b32 s4, s65, 3")
    e("s_add_u32 s4, s4, s64")
    e("s_lshr_b32 s5, s5, 3")
    e("s_lshl_b32 s15, s5, 1")
    e("s_add_u32 s15, s15, s64")
    e("s_lshl_b32 s7, s7, 2")
    e("s_add_u32 s5, s5, s7")
    e("s_lshl_b32 s8, s5, 17")
    e("s_lshl_b32 s9, s4, 8")
    e("s_lshl_b32 s10, s5, 5")
    e("s_add_u32 s10, s10, s4")
    e("s_lshl_b32 s68, s10, 2")
    e("s_add_u32 s68, s68, s3")
    e("s_mov_b32 s69, s10")
    e("s_lshl_b32 s10, s10, 15")
    e("s_lshl_b32 s11, s65, 20")
    e("s_lshl_b32 s6, s64, 7")
    e("s_add_u32 s11, s11, s6")
    e("s_lshl_b32 s12, s3, 12")
    e("s_lshl_b32 s13, s3, 13")
    e("v_lshrrev_b32 v3, 3, v1")
    e("v_lshrrev_b32 v4, 4, v1")
    e("v_and_b32 v7, 7, v1")
    e("v_xor_b32 v8, v7, v4")
    e("v_lshlrev_b32 v8, 4, v8")
    e("s_lshl_b32 s6, s3, 5")
    e("v_add_u32 v9, s6, v3")
    e("v_lshlrev_b32 v9, 10, v9")
    e("v_add_u32 v10, v9, v8")
    for i in range(1, 4):
        e("v_add_u32 v%d, 0x%x, v10" % (10 + i, i * (8192 - 1024)))
        if i & 1:
            e("v_xor_b32 v%d, 64, v%d" % (10 + i, 10 + i))
    e("v_and_b32 v8, 1, v4")
    e("v_lshlrev_b32 v8, 2, v8")
    e("v_xor_b32 v8, v7, v8")
    e("v_lshlrev_b32 v8, 4, v8")
    e("v_add_u32 v24, v9, v8")
    for i in range(1, 4):
        e("v_add_u32 v%d, 0x%x, v24" % (24 + i, i * (8192 - 1024)))
    e("v_and_b32 v7, 15, v1")
    e("v_lshlrev_b32 v8, 2, v4")
    e("v_xor_b32 v8, v7, v8")
    e("v_lshlrev_b32 v8, 4, v8")
    e("s_lshl_b32 s7, s3, 4")
    e("v_add_u32 v9, s7, v4")
    e("v_lshlrev_b32 v9, 13, v9")
    e("v_add_u32 v14, v9, v8")
    for i in range(1, 4):
        e("v_add_u32 v%d, 0x%x, v14" % (14 + i, i * (4 * 8192 - 1024)))
    e("v_add_u32 v9, s6, v4")
    e("v_lshlrev_b32 v9, 8, v9")
    e("v_add_u32 v22, v9, v8")
    e("v_xor_b32 v7, v7, v4")
    e("v_lshlrev_b32 v7, 4, v7")
    e("v_add_u32 v18, v9, v7")
    for i in range(1, 4):
        e("v_xor_b32 v%d, %d, v18" % (18 + i, 64 * i))
    e("v_lshlrev_b32 v23, 4, v1")
    e("v_mov_b32 v28, 0")
    for i, r in enumerate([SRD_X, SRD_WQ, SRD_K, SRD_WS, SRD_V, SRD_WO, SRD_OUT, SRD_DBG]):
        ki = {SRD_X: 0, SRD_K: 1, SRD_V: 2, SRD_WQ: 3, SRD_WO: 4, SRD_OUT: 5, SRD_DBG: 6, SRD_WS: 7}[r]
        e("s_mov_b32 s%d, s%d" % (r, 16 + 2 * ki))
        e("s_and_b32 s%d, s%d, 0xffff" % (r + 1, 17 + 2 * ki))
        e("s_mov_b32 s%d, 0x%x" % (r + 2, SIZES[r]))
        e("s_mov_b32 s%d, 0x20000" % (r + 3))
    stamp()

    def grp_stage(i):
        tag = "s%d" % i
        base = (i % 4) * SLOT
        P = []
        P.append([("s_add_u32 s6, s15, %d" % i, None), ("s_and_b32 s6, s6, 7", None),
                  ("s_lshl_b32 s7, s6, 7", None), ("s_add_u32 s14, s8, s7", None),
                  ("s_add_u32 m0, s12, 0x%x" % base, None),
                  ("s_lshl_b32 s7, s6, 19", None),
                  ("buffer_load_dwordx4 v10, %s, s14 offen%s lds" % (srd(SRD_X), nt), tag)])
        for k in range(1, 4):
            P.append([("buffer_load_dwordx4 v%d, %s, s14 offen offset:%d%s lds" % (10 + k, srd(SRD_X), 1024 * k, nt), tag)])
        P.append([("s_add_u32 m0, s12, 0x%x" % (base + 16384), None), ("s_add_u32 s14, s9, s7", None),
                  ("buffer_load_dwordx4 v14, %s, s14 offen%s lds" % (srd(SRD_WQ), nt), tag)])
        for k in range(1, 4):
            P.append([("buffer_load_dwordx4 v%d, %s, s14 offen offset:%d%s lds" % (14 + k, srd(SRD_WQ), 1024 * k, nt), tag)])
        return P
    def grp_kv(kind, base):
        P = []
        for hh in range(2):
            for k in range(4):
                p = []
                if k == 0:
                    p += [("s_add_u32 m0, s13, 0x%x" % (base + hh * 4096), None), ("s_add_u32 s14, s10, 0x%x" % (hh * 4096), None)]
                if kind == "K":
                    p.append(("buffer_load_dwordx4 v%d, %s, s14 offen offset:%d%s lds" % (18 + k, srd(SRD_K), 1024 * k, nt), "K"))
                else:
                    p.append(("buffer_load_dwordx4 v22, %s, s14 offen offset:%d%s lds" % (srd(SRD_V), 1024 * k, nt), "V"))
                P.append(p)
        return P
    WO_BASE = [SLOT, SLOT + 16384, 2 * SLOT, 2 * SLOT + 16384, 3 * SLOT, 3 * SLOT + 16384, KBASE, KBASE + 16384]
    def grp_wo(pair):
        P = []
        for hh in range(2):
            hs = pair * 2 + hh
            for k in range(4):
                p = []
                if k == 0:
                    p += [("s_add_u32 s6, s64, %d" % hs, None), ("s_and_b32 s6, s6, 7", None), ("s_lshl_b32 s6, s6, 17", None),
                          ("s_add_u32 m0, s12, 0x%x" % WO_BASE[hs], None), ("s_add_u32 s14, s11, s6", None)]
                p.append(("buffer_load_dwordx4 v%d, %s, s14 offen offset:%d%s lds" % (24 + k, srd(SRD_WO), 1024 * k, nt), "wo%d" % pair))
                P.append(p)
        return P
    def emit_piece(p):
        for t, tag in p:
            e(t, tag)
    G = [grp_stage(0), grp_stage(1), grp_kv("K", KBASE)] + [grp_stage(i) for i in range(2, 8)] + [grp_kv("V", VBASE), grp_wo(0)]
    for gi in range(ahead):
        for p in G[gi]:
            emit_piece(p)
        if gi == 0:
            e("s_lshl_b32 s6, s68, 7")
            e("s_add_u32 s7, s6, 0x%x" % WS_F2)
            e("s_add_u32 s6, s6, 0x%x" % WS_F1)
            e("s_mov_b64 exec, 1")
            e("buffer_store_dword v28, v28, %s, s6 offen sc1" % srd(SRD_WS), "clr")
            e("buffer_store_dword v28, v28, %s, s7 offen sc1" % srd(SRD_WS), "clr")
            e("s_mov_b64 exec, -1")
    e("v_and_b32 v2, 31, v1")
    e("v_lshrrev_b32 v3, 5, v1")
    e("v_lshrrev_b32 v4, 1, v2")
    e("v_and_b32 v4, 7, v4")
    e("v_xor_b32 v4, v4, v3")
    e("v_lshlrev_b32 v4, 4, v4")
    e("v_lshlrev_b32 v7, 7, v2")
    e("v_add3_u32 v%d, v4, v7, s12" % RX)
    for ks in range(1, 4):
        e("v_xor_b32 v%d, %d, v%d" % (RX + ks, ks * 32, RX))
    for ks in range(4):
        e("v_add_u32 v%d, 0x10000, v%d" % (RX + 4 + ks, RX + ks))
    e("v_bfe_u32 v4, v1, 2, 2")
    e("v_bfe_u32 v7, v1, 4, 1")
    e("v_lshlrev_b32 v7, 5, v7")
    e("v_and_b32 v8, 1, v1")
    e("v_lshlrev_b32 v8, 4, v8")
    e("v_bfe_u32 v9, v1, 1, 1")
    e("v_lshlrev_b32 v9, 3, v9")
    e("v_add3_u32 v8, v7, v8, v9")
    e("v_lshl_add_u32 v9, v3, 3, v4")
    e("v_lshlrev_b32 v9, 8, v9")
    e("v_add_u32 v8, v8, v9")
    e("v_lshlrev_b32 v9, 6, v4")
    e("v_add_u32 v%d, v8, v9" % RW)
    e("v_add_u32 v%d, 0x4000, v%d" % (RW, RW))
    for t in range(1, 4):
        e("v_xor_b32 v%d, %d, v%d" % (RW + t, t * 64, RW))
    for t in range(4):
        e("v_add_u32 v%d, 0x10000, v%d" % (RW + 4 + t, RW + t))
    e("v_and_b32 v8, 15, v2")
    e("v_xor_b32 v8, v8, v3")
    e("v_lshlrev_b32 v8, 4, v8")
    e("v_lshlrev_b32 v9, 8, v2")
    e("v_add_u32 v248, v8, v9")
    e("v_add_u32 v248, 0x%x, v248" % KBASE)
    e("v_and_b32 v8, 3, v1")
    e("v_lshl_add_u32 v8, v8, 3, v7")
    e("v_lshl_add_u32 v9, v3, 2, v4")
    e("v_lshlrev_b32 v249, 8, v9")
    e("v_lshl_add_u32 v249, v4, 6, v249")
    e("v_add_u32 v249, v249, v8")
    if VBASE:
        e("v_add_u32 v249, 0x%x, v249" % VBASE)
    e("v_lshlrev_b32 v250, 7, v9")
    e("v_lshrrev_b32 v9, 1, v4")
    e("v_lshl_add_u32 v250, v9, 6, v250")
    e("v_add_u32 v250, v250, v8")
    e("v_lshlrev_b32 v251, 10, v2")
    e("v_lshl_add_u32 v251, v3, 4, v251")

    def xread(n):
        st, ks = n // 4, n % 4
        sl = st % 4
        e("ds_read_b128 %s, v%d offset:%d" % (vr(XF + 4 * (n & 1), 4), RX + 4 * (sl >> 1) + ks, (sl & 1) * SLOT))
    def wread(n, t):
        st, ks = n // 4, n % 4
        sl = st % 4
        for j in range(2):
            e("ds_read_b64_tr_b16 %s, v%d offset:%d" % (vr(AF + 16 * (n & 1) + 4 * t + 2 * j, 2), RW + 4 * (sl >> 1) + t,
                                                       (sl & 1) * SLOT + (16 * ks + 4 * j) * 256))
    def barrier_for(tag):
        a.wait_lds_all()
        if tag:
            a.wait_vm(tag)
        e("s_barrier")
    barrier_for("s0")
    stamp()
    xread(0)
    for t in range(4):
        wread(0, t)
    pend = []
    for n in range(32):
        if n % 4 == 0:
            gi = ahead + n // 4
            if gi < len(G):
                pend = pend + G[gi]
        if (n + 1) % 4 == 0 and n + 1 < 32:
            barrier_for("s%d" % ((n + 1) // 4))
        if n == 31:
            barrier_for(None)
            e("v_mov_b32 v%d, v248" % RX)
            for kk in range(1, 8):
                e("v_xor_b32 v%d, %d, v248" % (RX + kk, kk * 32))
        for t in range(4):
            c = "0" if n == 0 else vr(ACC0 + 16 * t, 16)
            e("%s %s, %s, %s, %s" % (MFMA, vr(ACC0 + 16 * t, 16), vr(AF + 16 * (n & 1) + 4 * t, 4), vr(XF + 4 * (n & 1), 4), c))
            if n + 1 < 32:
                if t == 0:
                    xread(n + 1)
                wread(n + 1, t)
            else:
                e("ds_read_b128 %s, v%d offset:%d" % (vr(AF + 4 * t, 4), RX + t, 0))
            if (t & 1) and pend:
                emit_piece(pend.pop(0))
        if n == 4:
            e("s_cmp_lg_u32 s3, 0")
            e("s_cbranch_scc1 L_noann")
            e("v_mov_b32 v29, 1")
            e("s_mov_b64 exec, 1")
            a.raw("    buffer_store_byte v29, v28, %s, s69 offen sc1" % srd(SRD_DBG))
            e("s_mov_b64 exec, -1")
            a.label("L_noann")
            e("s_nop 1")
    while pend:
        emit_piece(pend.pop(0))
    stamp()

    pend = grp_wo(1) + grp_wo(2)
    def kread(f):
        T, kk = f // 8, f % 8
        e("ds_read_b128 %s, v%d offset:%d" % (vr(AF + 4 * (f % 8), 4), RX + kk, T * 8192))
    MX = 29
    def maxops(T, part):
        b = ACC1 + 16 * T + 4 * part
        if T == 0 and part == 0:
            e("v_max3_f32 v%d, v%d, v%d, v%d" % (MX, b, b + 1, b + 2))
            e("v_max_f32 v%d, v%d, v%d" % (MX, MX, b + 3))
        else:
            e("v_max3_f32 v%d, v%d, v%d, v%d" % (MX, b, b + 1, MX))
            e("v_max3_f32 v%d, v%d, v%d, v%d" % (MX, b + 2, b + 3, MX))
    for f in range(32):
        T, kk = f // 8, f % 8
        if T == 0:
            b = ACC0 + 16 * (kk >> 1) + 8 * (kk & 1)
            for i in range(4):
                e("v_cvt_pk_bf16_f32 v%d, v%d, v%d" % (PK + 4 * kk + i, b + 2 * i, b + 2 * i + 1))
        c = "0" if kk == 0 else vr(ACC1 + 16 * T, 16)
        e("%s %s, %s, %s, %s" % (MFMA, vr(ACC1 + 16 * T, 16), vr(AF + 4 * (f % 8), 4), vr(PK + 4 * kk, 4), c))
        if f + 4 < 32:
            kread(f + 4)
        if T > 0 and kk >= 4:
            maxops(T - 1, kk - 4)
        if (f & 1) and pend:
            emit_piece(pend.pop(0))
    e("v_mov_b32 v%d, v249" % RW)
    for t in range(1, 4):
        e("v_xor_b32 v%d, %d, v249" % (RW + t, 64 * t))
    barrier_for("V")
    def vread(m, t):
        for j in range(2):
            e("ds_read_b64_tr_b16 %s, v%d offset:%d" % (vr(AF + 16 * (m & 1) + 4 * t + 2 * j, 2), RW + t, (16 * m + 8 * j) * 256))
    for t in range(4):
        vread(0, t)
    pend = grp_wo(3)
    for part in range(4):
        maxops(3, part)
    stamp()
    e("v_mov_b32 v30, v%d" % MX)
    e("v_permlane32_swap_b32 v30, v%d" % MX)
    e("v_max_f32 v%d, v%d, v30" % (MX, MX))
    CS = math.log2(math.e) / math.sqrt(128.0)
    import struct
    cbits = struct.unpack("<I", struct.pack("<f", CS))[0]
    e("s_mov_b32 s6, 0x%08x" % cbits)
    e("v_mul_f32 v%d, s6, v%d" % (MX, MX))
    e("v_mov_b32 v31, 0")
    e("s_mov_b32 s67, 0x%08x" % cbits)
    def expops(m):
        b = ACC1 + 16 * (m >> 1) + 8 * (m & 1)
        ops = []
        for i in range(8):
            ops.append("v_fma_f32 v%d, v%d, s67, -v%d" % (b + i, b + i, MX))
        for i in range(8):
            ops.append("v_exp_f32 v%d, v%d" % (b + i, b + i))
        for i in range(4):
            ops.append("v_cvt_pk_bf16_f32 v%d, v%d, v%d" % (PK + 4 * m + i, b + 2 * i, b + 2 * i + 1))
        for i in range(8):
            ops.append("v_add_f32 v31, v31, v%d" % (b + i))
        return ops
    for o in expops(0):
        e(o)
    for m in range(8):
        nxt = expops(m + 1) if m + 1 < 8 else []
        per = (len(nxt) + 3) // 4
        for t in range(4):
            c = "0" if m == 0 else vr(ACC0 + 16 * t, 16)
            e("%s %s, %s, %s, %s" % (MFMA, vr(ACC0 + 16 * t, 16), vr(AF + 16 * (m & 1) + 4 * t, 4), vr(PK + 4 * m, 4), c))
            if m + 1 < 8:
                vread(m + 1, t)
            for o in nxt[t * per:(t + 1) * per]:
                e(o)
            if t == 1 and pend:
                emit_piece(pend.pop(0))
    while pend:
        emit_piece(pend.pop(0))
    e("v_mov_b32 v30, v31")
    e("v_permlane32_swap_b32 v30, v31")
    e("v_add_f32 v31, v31, v30")
    e("v_rcp_f32 v31, v31")
    for w in range(3):
        for t in range(2):
            if t == 0:
                e("v_add_u32 v%d, 0x%x, v250" % (RW + 2 * w, w * 65536))
            else:
                e("v_xor_b32 v%d, 64, v%d" % (RW + 2 * w + 1, RW + 2 * w))
    stamp()
    e("s_lshl_b32 s14, s68, 13")
    if WS_O:
        e("s_add_u32 s14, s14, 0x%x" % WS_O)
    e("s_add_u32 s7, s14, 4096")
    for m in range(8):
        b = ACC0 + 16 * (m >> 1) + 8 * (m & 1)
        for i in range(8):
            e("v_mul_f32 v%d, v31, v%d" % (b + i, b + i))
        for i in range(4):
            e("v_cvt_pk_bf16_f32 v%d, v%d, v%d" % (PK + 4 * m + i, b + 2 * i, b + 2 * i + 1))
        e("buffer_store_dwordx4 %s, v23, %s, %s offen offset:%d sc1" % (vr(PK + 4 * m, 4), srd(SRD_WS), "s14" if m < 4 else "s7", (m & 3) * 1024), "ost")
    stamp()
    def oread(hs, m, t):
        base = WO_BASE[hs]
        w = base >> 16
        off = base & 0xffff
        idx = (hs * 8 + m) & 1
        for j in range(2):
            e("ds_read_b64_tr_b16 %s, v%d offset:%d" % (vr(AF + 8 * ((hs * 8 + m) % 4) + 4 * t + 2 * j, 2), RW + 2 * w + t, off + (16 * m + 8 * j) * 128))
    def omfma(hs, m, t):
        n = hs * 8 + m
        c = "0" if n == 0 else vr(ACC1 + 16 * t, 16)
        bop = vr(PK + 4 * m, 4) if hs == 0 else ar((hs - 1) * 32 + 4 * m, 4)
        e("%s %s, %s, %s, %s" % (MFMA, vr(ACC1 + 16 * t, 16), vr(AF + 8 * (n % 4) + 4 * t, 4), bop, c))
    barrier_for("wo3")
    PD = 2
    for n in range(PD):
        for t in range(2):
            oread(n // 8, n % 8, t)
    for m in range(8):
        for t in range(2):
            omfma(0, m, t)
            n2 = m + PD
            oread(n2 // 8, n2 % 8, t)
    a.wait_vm("ost")
    stamp()
    e("v_mov_b32 v29, 1")
    e("s_lshl_b32 s6, s68, 7")
    e("s_add_u32 s6, s6, 0x%x" % WS_F1)
    e("s_mov_b64 exec, 1")
    e("buffer_store_dword v29, v28, %s, s6 offen sc1" % srd(SRD_WS), "fl1")
    e("s_mov_b64 exec, 0xff")
    e("v_lshlrev_b32 v2, 2, v1")
    e("s_lshl_b32 s6, s5, 5")
    e("s_mov_b32 s7, %d" % spin_limit)
    e("v_mov_b32 v3, 0x01010101")
    a.label("L_hs")
    e("buffer_load_dword v4, v2, %s, s6 offen sc1" % srd(SRD_DBG))
    e("s_waitcnt vmcnt(0)")
    e("v_cmp_ne_u32 vcc, v4, v3")
    e("s_cbranch_vccz L_hs_ok")
    e("s_sleep %d" % poll_sleep)
    e("s_sub_u32 s7, s7, 1")
    e("s_cmp_lg_u32 s7, 0")
    e("s_cbranch_scc1 L_hs")
    a.label("L_hs_ok")
    e("v_lshlrev_b32 v2, 9, v1")
    e("s_and_b32 s6, s68, 0xffffffe3")
    e("s_lshl_b32 s66, s6, 13")
    e("s_lshl_b32 s6, s6, 7")
    e("s_add_u32 s6, s6, 0x%x" % WS_F1)
    e("s_mov_b32 s7, %d" % spin_limit)
    a.label("L_p1")
    e("buffer_load_dword v4, v2, %s, s6 offen sc1" % srd(SRD_WS))
    e("s_waitcnt vmcnt(0)")
    e("v_cmp_ne_u32 vcc, 1, v4")
    e("s_cbranch_vccz L_p1_ok")
    e("s_sleep %d" % poll_sleep)
    e("s_sub_u32 s7, s7, 1")
    e("s_cmp_lg_u32 s7, 0")
    e("s_cbranch_scc1 L_p1")
    a.label("L_p1_ok")
    e("s_mov_b64 exec, -1")
    stamp()
    for hs in range(1, 8):
        e("s_add_u32 s6, s64, %d" % hs)
        e("s_and_b32 s6, s6, 7")
        e("s_lshl_b32 s6, s6, 15")
        e("s_add_u32 s14, s66, s6")
        if WS_O:
            e("s_add_u32 s14, s14, 0x%x" % WS_O)
        e("s_add_u32 s7, s14, 4096")
        for m in range(8):
            e("buffer_load_dwordx4 %s, v23, %s, %s offen offset:%d sc1" % (ar((hs - 1) * 32 + 4 * m, 4), srd(SRD_WS), "s14" if m < 4 else "s7", (m & 3) * 1024), "old")
    for hs in range(1, 8):
        for m in range(8):
            for t in range(2):
                omfma(hs, m, t)
                n2 = hs * 8 + m + PD
                if n2 < 64:
                    oread(n2 // 8, n2 % 8, t)
        if hs == 1:
            stamp()
    stamp()
    e("s_cmp_eq_u32 s3, s65")
    e("s_cbranch_scc1 L_reduce")
    e("s_lshl_b32 s14, s68, 13")
    e("s_add_u32 s14, s14, 0x%x" % WS_P)
    e("s_add_u32 s7, s14, 4096")
    for i in range(8):
        e("buffer_store_dwordx4 %s, v23, %s, %s offen offset:%d sc1" % (vr(ACC1 + 4 * i, 4), srd(SRD_WS), "s14" if i < 4 else "s7", (i & 3) * 1024), "pst")
    e("s_lshl_b32 s6, s68, 7")
    e("s_add_u32 s6, s6, 0x%x" % WS_F2)
    e("s_waitcnt vmcnt(0)")
    e("s_mov_b64 exec, 1")
    e("buffer_store_dword v29, v28, %s, s6 offen sc1" % srd(SRD_WS), "fl2")
    e("s_mov_b64 exec, -1")
    if stamps:
        sv = nst[0]
        stamp(); stamp(); stamp()
        nst[0] = sv
        e("s_branch L_stamps")
    else:
        e("s_endpgm")
    a.label("L_reduce")
    e("s_nop 15")
    e("s_and_b32 s6, s68, 0xffffff9f")
    e("s_lshl_b32 s66, s6, 13")
    e("s_add_u32 s66, s66, 0x%x" % WS_P)
    e("s_lshl_b32 s6, s6, 7")
    e("s_add_u32 s6, s6, 0x%x" % WS_F2)
    e("v_lshlrev_b32 v2, 12, v1")
    e("s_lshl_b32 s7, 1, s65")
    e("s_xor_b32 s7, s7, 0xf")
    e("s_mov_b32 exec_lo, s7")
    e("s_mov_b32 exec_hi, 0")
    e("s_mov_b32 s7, %d" % spin_limit)
    a.label("L_p2")
    e("buffer_load_dword v4, v2, %s, s6 offen sc1" % srd(SRD_WS))
    e("s_waitcnt vmcnt(0)")
    e("v_cmp_ne_u32 vcc, 1, v4")
    e("s_cbranch_vccz L_p2_ok")
    e("s_sleep %d" % poll_sleep)
    e("s_sub_u32 s7, s7, 1")
    e("s_cmp_lg_u32 s7, 0")
    e("s_cbranch_scc1 L_p2")
    a.label("L_p2_ok")
    e("s_mov_b64 exec, -1")
    stamp()
    for k in range(1, 4):
        e("s_add_u32 s6, s65, %d" % k)
        e("s_and_b32 s6, s6, 3")
        e("s_lshl_b32 s6, s6, 18")
        e("s_add_u32 s14, s66, s6")
        e("s_add_u32 s7, s14, 4096")
        for i in range(8):
            e("buffer_load_dwordx4 %s, v23, %s, %s offen offset:%d sc1" % (vr(32 * k + 4 * i, 4), srd(SRD_WS), "s14" if i < 4 else "s7", (i & 3) * 1024), "pld")
    e("s_lshl_b32 s6, s65, 15")
    e("s_add_u32 s14, s8, s6")
    e("s_lshl_b32 s6, s64, 7")
    e("s_add_u32 s14, s14, s6")
    for k in range(1, 4):
        for i in range(32):
            e("v_add_f32 v%d, v%d, v%d" % (ACC1 + i, ACC1 + i, 32 * k + i))
    stamp()
    for i in range(16):
        e("v_cvt_pk_bf16_f32 v%d, v%d, v%d" % (PK + i, ACC1 + 2 * i, ACC1 + 2 * i + 1))
    for p in range(4):
        b = PK + 4 * p
        e("v_permlane32_swap_b32 v%d, v%d" % (b, b + 2))
        e("v_permlane32_swap_b32 v%d, v%d" % (b + 1, b + 3))
        e("buffer_store_dwordx4 %s, v251, %s, s14 offen offset:%d" % (vr(b, 4), srd(SRD_OUT), 32 * p))
    stamp()
    if stamps:
        a.label("L_stamps")
        e("s_waitcnt vmcnt(0) lgkmcnt(0)")
        stamp()
        e("s_waitcnt lgkmcnt(0)")
        ns = nst[0]
        e("s_lshl_b32 s6, s2, 2")
        e("s_add_u32 s6, s6, s3")
        e("s_mul_i32 s6, s6, %d" % (ns * 8))
        e("s_add_u32 s6, s6, 0x%x" % WS_ST)
        e("s_mov_b64 exec, 1")
        for i in range(ns):
            e("v_mov_b32 v2, s%d" % (STAMP0 + 2 * i))
            e("v_mov_b32 v3, s%d" % (STAMP0 + 2 * i + 1))
            e("buffer_store_dwordx2 v[2:3], v28, %s, s6 offen offset:%d" % (srd(SRD_WS), 8 * i))
            e("s_nop 1")
        print("stamps", ns)
    a.label("L_end")
    e("s_endpgm")
    a.label("L_code_end")
    body = a.finalize()
    s = HEADER + "; @launch grid=(256,1,1) block=(256,1,1) lds=163840\n" + '.amdgcn_target "amdgcn-amd-amdhsa--gfx950"\n'
    s += kernel_begin(NAME) + body + kernel_desc(NAME, 512, 102, 256)
    open(path, "w").write(s)
    print(path, a.stats)

if __name__ == "__main__":
    gen("k1.s")
    gen("k1_st.s", stamps=True)
```
